```python
import torch

def _softmax(x, axis=-1):
    return torch.softmax(x, dim=axis)
def _gelu(x):
    return torch.nn.functional.gelu(x, approximate="tanh")
def _silu(x):
    return torch.nn.functional.silu(x)
def _sigmoid(x):
    return torch.sigmoid(x)
def _layernorm(x, axis=-1, eps=1e-5):
    m = x.mean(dim=axis, keepdim=True)
    v = x.var(dim=axis, keepdim=True, unbiased=False)
    return (x - m) / torch.sqrt(v + eps)
def _scatter_add(tgt, idx, src, axis=0):
    return tgt.clone().index_add_(axis, idx, src)
def _segment_sum(src, seg, n):
    out = torch.zeros((n,) + src.shape[1:], dtype=src.dtype)
    return out.index_add_(0, seg, src)
def _pad(x, pw):
    flat = tuple(v for pair in reversed(pw) for v in pair)
    return torch.nn.functional.pad(x, flat)

kernel_name = 'standalone__gqa_block_cached__sampling'

def setup_inputs():

    _w = (lambda a: (lambda t: t.to(torch.bfloat16) if t.is_floating_point() else t)(torch.as_tensor(a)))
    B, Sq, D = 16, 32, 512
    Hq, Hkv, Sk, Dh = 32, 8, 4096, 128
    assert Hq % Hkv == 0, (Hq, Hkv)
    return {
        "x": _w((lambda *s: torch.randn(*s, dtype=torch.bfloat16) * 0.8)(B, Sq, D)),
        "k_cache": _w((lambda *s: torch.randn(*s, dtype=torch.bfloat16) * 0.8)(B, Hkv, Sk, Dh)),
        "v_cache": _w((lambda *s: torch.randn(*s, dtype=torch.bfloat16) * 0.05)(B, Hkv, Sk, Dh)),
        "wq": _w((lambda *s: torch.randn(*s, dtype=torch.bfloat16) * 0.8)(D, Hq * Dh) * (D ** -0.5)),
        "wo": _w((lambda *s: torch.randn(*s, dtype=torch.bfloat16) * 0.05)(Hq * Dh, D) * ((Hq * Dh) ** -0.5)),
    }

def reference(x, k_cache, v_cache, wq, wo):
    B, Sq, D = x.shape
    Hq, Dh = 32, 128
    Hkv = k_cache.shape[1]
    rep = Hq // Hkv
    q = (lambda x, *d: x.permute(*d))((x @ wq).reshape(B, Sq, Hq, Dh), 0, 2, 1, 3)
    k = (lambda x, n, axis: torch.repeat_interleave(x, n, dim=axis))(k_cache, rep, axis=1)
    v = (lambda x, n, axis: torch.repeat_interleave(x, n, dim=axis))(v_cache, rep, axis=1)
    scores = torch.einsum("bhqd,bhkd->bhqk", q, k) * (Dh ** -0.5)
    p = _softmax(scores, axis=-1)
    o = torch.einsum("bhqk,bhkd->bhqd", p, v)
    return (lambda x, *d: x.permute(*d))(o, 0, 2, 1, 3).reshape(B, Sq, Hq * Dh) @ wo
```

```python
import sys
HDR = '''.amdgcn_target "amdgcn-amd-amdhsa--gfx950"
.text
.globl standalone__gqa_block_cached__sampling_kernel
.p2align 8
.type standalone__gqa_block_cached__sampling_kernel,@function
standalone__gqa_block_cached__sampling_kernel:'''
def FTR(nv=512, acc=256): return '''L_end:
s_endpgm
.section .rodata,"a"
.p2align 6
.amdhsa_kernel standalone__gqa_block_cached__sampling_kernel
.amdhsa_next_free_vgpr %d
.amdhsa_next_free_sgpr 96
.amdhsa_accum_offset %d
.amdhsa_group_segment_fixed_size 0
.amdhsa_kernarg_size 64
.amdhsa_user_sgpr_count 2
.amdhsa_user_sgpr_kernarg_segment_ptr 1
.amdhsa_system_sgpr_workgroup_id_x 1
.end_amdhsa_kernel''' % (nv, acc)

def gen(pattern="kvfirst", win=48, nstage=4, wqkb=128, rot=True, ratio=4, wqflags="", xcc=False, lead=0):
    nw = 4; tile_bytes = 16384; stage_bytes = 32768; lds = nstage * stage_bytes
    L = []; A = L.append
    A("; @launch grid=(256,1,1) block=(256,1,1) lds=%d" % lds)
    A(HDR)
    A("s_cmp_ge_u32 s2, 256\ns_cbranch_scc1 L_end")
    A("s_memrealtime s[40:41]")
    A("s_load_dwordx4 s[4:7], s[0:1], 8")
    A("s_load_dwordx2 s[8:9], s[0:1], 24")
    A("s_load_dwordx2 s[12:13], s[0:1], 56")
    A("v_lshrrev_b32 v1, 6, v0\ns_nop 0\nv_readfirstlane_b32 s20, v1")
    A("s_and_b32 s14, s2, 7\ns_lshr_b32 s15, s2, 4\ns_lshr_b32 s16, s2, 3\ns_and_b32 s16, s16, 1")
    A("s_lshl_b32 s17, s15, 3\ns_add_u32 s17, s17, s14\ns_lshl_b32 s17, s17, 20")
    A("s_lshl_b32 s18, s16, 19\ns_add_u32 s17, s17, s18")
    A("s_waitcnt lgkmcnt(0)")
    A("s_add_u32 s24, s4, s17\ns_addc_u32 s25, s5, 0\ns_mov_b32 s26, %d\ns_mov_b32 s27, 0x20000" % (2048 * 256))
    A("s_add_u32 s28, s6, s17\ns_addc_u32 s29, s7, 0\ns_mov_b32 s30, %d\ns_mov_b32 s31, 0x20000" % (2048 * 256))
    A("s_mov_b32 s32, s8\ns_mov_b32 s33, s9\ns_mov_b32 s34, %d\ns_mov_b32 s35, 0x20000" % (512 * 8192))
    A("v_and_b32 v2, 63, v0\nv_lshlrev_b32 v2, 4, v2")
    A("s_mul_i32 s21, s20, 4096")
    A("v_add_u32 v2, s21, v2")
    A("v_and_b32 v3, 63, v0\nv_lshrrev_b32 v4, 4, v3\nv_lshlrev_b32 v4, 13, v4\nv_and_b32 v3, 15, v3\nv_lshlrev_b32 v3, 4, v3\nv_add_u32 v3, v3, v4")
    A("s_lshl_b32 s36, s14, 10\ns_lshl_b32 s37, s20, 8\ns_add_u32 s36, s36, s37\nv_add_u32 v3, s36, v3")
    if rot: A("s_lshr_b32 s38, s2, 3\ns_lshl_b32 s38, s38, 17")
    else: A("s_mov_b32 s38, 0")
    A("s_mov_b32 s22, 0\ns_mov_b32 s23, s21")
    pend = []
    kvleft = [nstage * 8]
    kvi = [0]
    def kv1():
        i = kvi[0] % 8
        if i == 0: A("s_mov_b32 m0, s23\ns_nop 0")
        if i == 4: A("s_add_u32 m0, s23, %d\ns_nop 0" % tile_bytes)
        A("buffer_load_dwordx4 v2, s[%d:%d], s22 offen offset:%d nt lds" % ((24, 27) if i < 4 else (28, 31)) % () if False else
          "buffer_load_dwordx4 v2, %s, s22 offen offset:%d nt lds" % ("s[24:27]" if i < 4 else "s[28:31]", (i % 4) * 1024))
        if i == 7:
            A("s_add_u32 s22, s22, %d\ns_add_u32 s23, s23, %d\ns_cmp_ge_u32 s23, %d\ns_cbranch_scc0 1f\ns_sub_u32 s23, s23, %d\n1:" % (tile_bytes, stage_bytes, lds, lds))
        kvi[0] += 1
        pend.append("kv")
    nslots = win
    def wq1(i):
        r = 16 + 4 * (i % nslots)
        reg = "v[%d:%d]" % (r, r + 3) if r < 252 else "a[%d:%d]" % (r - 252, r - 249)
        A("buffer_load_dwordx4 %s, v3, s[32:35], s38 offen%s" % (reg, wqflags))
        A("s_add_u32 s38, s38, 32768\ns_and_b32 s38, s38, %d" % (512 * 8192 - 1))
        pend.append(("wq", i))
    def waitfor(i):
        idx = pend.index(("wq", i))
        n = len(pend) - idx - 1
        assert n <= 63, n
        A("s_waitcnt vmcnt(%d)" % n)
        del pend[:idx + 1]
    nwq = wqkb
    if pattern == "kvfirst":
        while kvi[0] < nstage * 8: kv1()
    if pattern == "lead":
        while kvi[0] < lead: kv1()
    issued = 0
    for i in range(nwq):
        while issued < nwq and issued < i + win and len(pend) < 62:
            wq1(issued); issued += 1
            if pattern in ("mix", "lead") and issued % ratio == 0 and kvi[0] < nstage * 8 and len(pend) < 62: kv1()
        waitfor(i)
    A("s_memrealtime s[44:45]")
    while kvi[0] < nstage * 8: kv1()
    A("s_mov_b32 s19, 0")
    A("L_loop:")
    A("s_waitcnt vmcnt(%d)" % (8 * (nstage - 1)))
    A("s_barrier")
    for i in range(8): kv1()
    A("s_add_u32 s19, s19, 1\ns_cmp_lt_u32 s19, %d\ns_cbranch_scc1 L_loop" % (32 - nstage))
    A("s_waitcnt vmcnt(0)\ns_barrier")
    A("s_memrealtime s[42:43]")
    A("s_getreg_b32 s46, hwreg(HW_REG_XCC_ID)")
    A("s_waitcnt lgkmcnt(0)")
    A("s_add_u32 s12, s12, 0x10000000\ns_addc_u32 s13, s13, 0\ns_lshl_b32 s3, s2, 6")
    A("v_mov_b32 v3, s3\nv_mov_b32 v4, s40\nv_mov_b32 v5, s41\nv_mov_b32 v6, s44\nv_mov_b32 v7, s45\nv_mov_b32 v8, s42\nv_mov_b32 v9, s43\nv_mov_b32 v10, s46\nv_mov_b32 v11, 0")
    A("v_cmp_eq_u32 vcc, 0, v0\ns_and_saveexec_b64 s[48:49], vcc\ns_cbranch_execz L_end")
    A("global_store_dwordx4 v3, v[4:7], s[12:13]\nglobal_store_dwordx4 v3, v[8:11], s[12:13] offset:16")
    A(FTR())
    return "\n".join(L) + "\n"
if __name__ == "__main__":
    cfgs = {
      "q_none": dict(pattern="kvfirst", wqkb=0),
      "q_kvfirst": dict(pattern="kvfirst", win=30),
      "q_wqfirst": dict(pattern="wqfirst", win=60),
      "q_wqfirst_norot": dict(pattern="wqfirst", win=60, rot=False),
      "q_wqfirst_w30": dict(pattern="wqfirst", win=30),
      "q_mix4": dict(pattern="mix", win=48, ratio=4),
      "q_mix3": dict(pattern="mix", win=44, ratio=3),
      "q_mix2": dict(pattern="mix", win=40, ratio=2),
      "q_lead8": dict(pattern="lead", lead=8, win=48, ratio=4),
      "q_lead16": dict(pattern="lead", lead=16, win=44, ratio=6),
      "q_mix3_s5": dict(pattern="mix", win=44, ratio=3, nstage=5),
      "q_half_mix2": dict(pattern="mix", win=40, ratio=2, wqkb=64),
    }
    for n, c in cfgs.items():
        open("exp/%s.s" % n, "w").write(gen(**c))
    print(" ".join("exp/%s.s" % n for n in cfgs))
    print(", ".join('"exp/%s.s"' % n for n in cfgs))
```

```python
from gen_pro import HDR, FTR
def gen(lds=0, nv=16, blk=256, grid=256, dirty=0, spin=2000):
    L = []; A = L.append
    A("; @launch grid=(%d,1,1) block=(%d,1,1) lds=%d" % (grid, blk, lds))
    A(HDR)
    A("s_cmp_ge_u32 s2, 256\ns_cbranch_scc1 L_end")
    A("s_memrealtime s[40:41]")
    A("s_load_dwordx2 s[12:13], s[0:1], 56")
    A("s_waitcnt lgkmcnt(0)")
    A("s_add_u32 s50, s40, %d" % spin)
    A("4:\ns_memrealtime s[52:53]\ns_waitcnt lgkmcnt(0)\ns_sub_u32 s3, s52, s50\ns_cmp_lt_i32 s3, 0\ns_cbranch_scc1 4b")
    if dirty:
        A("s_lshl_b32 s3, s2, 16\nv_lshlrev_b32 v3, 4, v0\nv_add_u32 v3, s3, v3")
        for i in range(dirty): A("global_store_dwordx4 v3, v[4:7], s[12:13]\nv_add_u32 v3, 4096, v3")
        A("s_waitcnt vmcnt(0)")
    A("s_memrealtime s[42:43]")
    A("s_waitcnt lgkmcnt(0)")
    A("s_add_u32 s12, s12, 0x10000000\ns_addc_u32 s13, s13, 0\ns_lshl_b32 s3, s2, 6")
    A("v_mov_b32 v3, s3\nv_mov_b32 v4, s40\nv_mov_b32 v5, s41\nv_mov_b32 v6, s42\nv_mov_b32 v7, s43")
    A("v_cmp_eq_u32 vcc, 0, v0\ns_and_saveexec_b64 s[48:49], vcc\ns_cbranch_execz L_end")
    A("global_store_dwordx4 v3, v[4:7], s[12:13]")
    A(FTR(nv, min(nv, 256)))
    return "\n".join(L) + "\n"
if __name__ == "__main__":
    cfgs = {"tr_small": dict(), "tr_lds": dict(lds=163840), "tr_v512": dict(nv=512), "tr_both": dict(lds=163840, nv=512), "tr_dirty": dict(lds=163840, nv=512, dirty=8), "tr_64": dict(blk=64)}
    for n, c in cfgs.items(): open("exp/%s.s" % n, "w").write(gen(**c))
    print(" ".join("exp/%s.s" % n for n in cfgs)); print(", ".join('"exp/%s.s"' % n for n in cfgs))
```
